```python
import torch

def _softmax(x, axis=-1):
    return torch.softmax(x, dim=axis)
def _gelu(x):
    return torch.nn.functional.gelu(x, approximate="tanh")
def _silu(x):
    return torch.nn.functional.silu(x)
def _sigmoid(x):
    return torch.sigmoid(x)
def _layernorm(x, axis=-1, eps=1e-5):
    m = x.mean(dim=axis, keepdim=True)
    v = x.var(dim=axis, keepdim=True, unbiased=False)
    return (x - m) / torch.sqrt(v + eps)
def _scatter_add(tgt, idx, src, axis=0):
    return tgt.clone().index_add_(axis, idx, src)
def _segment_sum(src, seg, n):
    out = torch.zeros((n,) + src.shape[1:], dtype=src.dtype)
    return out.index_add_(0, seg, src)
def _pad(x, pw):
    flat = tuple(v for pair in reversed(pw) for v in pair)
    return torch.nn.functional.pad(x, flat)

kernel_name = 'sequential_preLN__mha_block__mixer_token_mlp__prompt'

def setup_inputs():

    _w = (lambda a: (lambda t: t.to(torch.bfloat16) if t.is_floating_point() else t)(torch.as_tensor(a)))
    def _A_setup():
        B, S, D, H = 1, 2048, 448, 16
        return {
            "x": _w((lambda *s: torch.randn(*s, dtype=torch.bfloat16) * 0.05)(B, S, D)),
            "wqkv": _w((lambda *s: torch.randn(*s, dtype=torch.bfloat16) * 0.05)(D, 3 * D)),
            "wo": _w((lambda *s: torch.randn(*s, dtype=torch.bfloat16) * 0.05)(D, D)),
        }
    _A_in = _A_setup()

    def _B_setup():
        B, S, D, F = 1, 2048, 448, 1792
        return {
            "x": _w((lambda *s: torch.randn(*s, dtype=torch.bfloat16) * 0.05)(B, S, D)),
            "w1": _w((lambda *s: torch.randn(*s, dtype=torch.bfloat16) * 0.8)(S, F) * (S ** -0.5)),
            "b1": _w((lambda *s: torch.randn(*s, dtype=torch.bfloat16) * 12.8)(F) * 0.02),
            "w2": _w((lambda *s: torch.randn(*s, dtype=torch.bfloat16) * 0.2)(F, S) * (F ** -0.5)),
            "b2": _w((lambda *s: torch.randn(*s, dtype=torch.bfloat16) * 1.6)(S) * 0.02),
        }
    _B_in = _B_setup()

    return {
        "A_x": _A_in["x"],
        "A_wqkv": _A_in["wqkv"],
        "A_wo": _A_in["wo"],
        "B_x": _B_in["x"],
        "B_w1": _B_in["w1"],
        "B_b1": _B_in["b1"],
        "B_w2": _B_in["w2"],
        "B_b2": _B_in["b2"],
    }

def reference(A_x, A_wqkv, A_wo, B_x, B_w1, B_b1, B_w2, B_b2):
    def _A_ref(x, wqkv, wo):
        B, S, D = x.shape
        H = 16
        Dh = D // H
        qkv = (lambda x, *d: x.permute(*d))((x @ wqkv).reshape(B, S, 3, H, Dh), 2, 0, 3, 1, 4)
        q, k, v = qkv[0], qkv[1], qkv[2]
        scores = torch.einsum("bhqd,bhkd->bhqk", q, k) * (Dh ** -0.5)
        p = _softmax(scores, axis=-1)
        o = torch.einsum("bhqk,bhkd->bhqd", p, v)
        return (lambda x, *d: x.permute(*d))(o, 0, 2, 1, 3).reshape(B, S, D) @ wo

    def _B_ref(x, w1, b1, w2, b2):
        B, S, D = x.shape
        h = _layernorm(x, axis=-1)
        u = torch.einsum("bsd,sf->bdf", h, w1) + b1
        u = _gelu(u)
        y = torch.einsum("bdf,fs->bds", u, w2) + b2
        return (lambda x, *d: x.permute(*d))(y, 0, 2, 1)

    x = A_x
    h = x + _A_ref(_layernorm(x, axis=-1), A_wqkv, A_wo)
    h2 = h + _B_ref(_layernorm(h, axis=-1), B_w1, B_b1, B_w2, B_b2)
    return h2
```

```python
import re

TRANS = ("v_exp_f32", "v_log_f32", "v_rcp_f32", "v_rsq_f32", "v_sqrt_f32", "v_sin_f32", "v_cos_f32",
         "v_exp_f16", "v_rcp_iflag_f32")

def regs_of(tok):
    tok = tok.strip()
    tok = tok.lstrip("-")
    m = re.fullmatch(r"abs\((.*)\)", tok)
    if m: tok = m.group(1)
    m = re.fullmatch(r"\|(.*)\|", tok)
    if m: tok = m.group(1)
    m = re.fullmatch(r"([vas])\[(\d+):(\d+)\]", tok)
    if m: return {(m.group(1), i) for i in range(int(m.group(2)), int(m.group(3)) + 1)}
    m = re.fullmatch(r"([vas])(\d+)", tok)
    if m: return {(m.group(1), int(m.group(2)))}
    if tok == "vcc": return {("s", "vcc")}
    if tok == "exec": return {("s", "exec")}
    if tok == "m0": return {("s", "m0")}
    return set()

class Ins:
    def __init__(self, text):
        self.text = text
        t = text.split(";")[0].strip()
        self.label = None
        self.op = None
        self.rd = set(); self.wr = set()
        self.cls = "other"
        self.passes = 0
        self.srcC = set(); self.srcAB = set()
        self.wide_store = set()
        self.states = 1
        if not t or t.startswith("."):
            self.cls = "none"; self.states = 0
            return
        if t.endswith(":"):
            self.label = t[:-1]; self.cls = "none"; self.states = 0
            return
        parts = t.split(None, 1)
        op = parts[0]; self.op = op
        rest = parts[1] if len(parts) > 1 else ""
        ops = [o.strip() for o in re.split(r",(?![^\[]*\])", rest)] if rest else []
        mods = ""
        if ops:
            lp = ops[-1].split(None, 1)
            ops[-1] = lp[0]
            mods = lp[1] if len(lp) > 1 else ""
        self.ops = ops; self.mods = mods
        R = [regs_of(o) for o in ops]
        base = re.sub(r"_(e32|e64|dpp|sdwa)$", "", op)
        if op == "s_nop":
            self.cls = "nop"; self.states = int(ops[0], 0) + 1
        elif op.startswith("v_mfma"):
            self.cls = "mfma"
            self.passes = 8 if "32x32x16" in op or "32x32x8" in op else 4
            self.wr = R[0]; self.srcAB = R[1] | R[2]; self.srcC = R[3]
            self.rd = self.srcAB | self.srcC
        elif op.startswith("v_"):
            self.cls = "valu"
            if base in TRANS: self.cls = "trans"
            if base.startswith("v_dot"): self.cls = "dot"
            self.wr = set(R[0])
            for r in R[1:]: self.rd |= r
            if base.startswith("v_permlane") and "swap" in base:
                self.wr = R[0] | R[1]; self.rd = R[0] | R[1]
            if base.startswith("v_fmac") or base.startswith("v_dot2c") or base == "v_writelane_b32":
                self.rd |= R[0]
            if "dst_unused:UNUSED_PRESERVE" in mods: self.rd |= R[0]
            if base.startswith("v_cmpx"): self.wr |= {("s", "exec")}
            self.dpp = ("quad_perm" in mods or "row_" in mods or "wave_" in mods)
        elif op.startswith("buffer_load") or op.startswith("global_load"):
            self.cls = "vmem"
            if re.search(r"\blds\b", mods):
                for r in R: self.rd |= r
                self.rd |= {("s", "m0")}
                self.dma = True
            else:
                self.wr = R[0]
                for r in R[1:]: self.rd |= r
        elif op.startswith("buffer_store") or op.startswith("buffer_atomic"):
            self.cls = "vmem"
            for r in R: self.rd |= r
            if op.endswith("x4") or op.endswith("x3"): self.wide_store = R[0]
            if op.startswith("buffer_atomic") and "sc0" in mods: self.wr = R[0]
        elif op.startswith("buffer_") :
            self.cls = "vmem"
        elif op.startswith("ds_read") or op.startswith("ds_bpermute") or op.startswith("ds_swizzle"):
            self.cls = "ds"; self.wr = R[0]
            for r in R[1:]: self.rd |= r
        elif op.startswith("ds_"):
            self.cls = "ds"
            for r in R: self.rd |= r
        elif op.startswith("s_"):
            self.cls = "salu"
            if op.startswith("s_cmp") or op.startswith("s_cbranch") or op in ("s_branch", "s_waitcnt", "s_barrier", "s_endpgm", "s_setprio", "s_sleep"):
                for r in R: self.rd |= r
            else:
                if R: self.wr = set(R[0])
                for r in R[1:]: self.rd |= r
                if "saveexec" in op: self.wr |= {("s", "exec")}

def isv(regs): return {r for r in regs if r[0] in "va"}
def iss(regs): return {r for r in regs if r[0] == "s"}

def need(p, c):
    n = 0
    pv = p.cls in ("valu", "trans", "dot")
    cv = c.cls in ("valu", "trans", "dot")
    if pv:
        w = isv(p.wr)
        if c.cls == "mfma" and (w & c.rd): n = max(n, 3 if p.cls == "dot" else 2)
        if p.cls == "trans" and cv and c.cls != "trans" and (w & c.rd): n = max(n, 1)
        if cv and c.op.startswith("v_permlane") and (w & c.rd): n = max(n, 2)
        if cv and (c.op.startswith("v_readlane") or c.op.startswith("v_readfirstlane")) and (w & c.rd): n = max(n, 1)
        if cv and getattr(c, "dpp", False) and (w & c.rd): n = max(n, 2)
        if p.cls == "dot":
            if c.cls == "dot" and c.op == p.op:
                srcs = set()
                for o in c.ops[1:3]: srcs |= regs_of(o)
                if w & srcs: n = max(n, 3)
            elif (w & (c.rd | c.wr)): n = max(n, 3)
        if "dst_sel" in getattr(p, "mods", "") or "op_sel" in getattr(p, "mods", ""):
            if cv and (w & (c.rd | c.wr)): n = max(n, 1)
        ws = iss(p.wr)
        if ws:
            if cv and (ws & c.rd): n = max(n, 4 if ("lane" in c.op) else 2)
            if c.cls == "vmem" and (ws & c.rd): n = max(n, 5)
            if c.cls == "salu" and (ws & c.rd): n = max(n, 1)
            if ("s", "exec") in ws and c.cls == "mfma": n = max(n, 4)
            if ("s", "vcc") in ws and c.op in ("s_cbranch_vccz", "s_cbranch_vccnz"): n = max(n, 5)
    if p.cls == "mfma":
        big = {8: 12, 4: 8}[p.passes]
        if c.cls == "mfma":
            if p.wr & c.srcAB: n = max(n, big)
            if p.wr & c.srcC and not (p.wr == c.srcC and p.passes == c.passes): n = max(n, big - 2)
            if (p.wr & c.wr) and not (p.wr & c.srcC): n = max(n, big - 2) if p.wr != c.wr or p.passes != c.passes else n
        elif cv:
            if p.wr & (c.rd | c.wr): n = max(n, big)
            if p.srcC & c.wr: n = max(n, {8: 7, 4: 3}[p.passes])
        elif c.cls in ("vmem", "ds"):
            if p.wr & (c.rd | c.wr): n = max(n, big)
    if p.wide_store and (p.wide_store & c.wr):
        n = max(n, 2 if (cv or c.cls == "mfma") else 1)
    if p.cls == "salu" and ("s", "m0") in p.wr and getattr(c, "dma", False): n = max(n, 1)
    return n

WIN = 24
def pad(lines, name=""):
    out = []
    for t in lines:
        c = Ins(t)
        if c.cls != "none":
            dist = 0; req = 0
            for p in reversed(out[-60:]):
                if p.cls == "none": continue
                if p.op in ("s_branch", "s_endpgm"): break
                k = need(p, c)
                if k > dist: req = max(req, k - dist)
                dist += p.states
                if dist >= WIN: break
            while req > 0:
                k = min(req, 16)
                out.append(Ins(f"    s_nop {k-1}"))
                req -= k
        out.append(c)
    labels = {i.label: n for n, i in enumerate(out) if i.label}
    for n, i in enumerate(out):
        if i.op and (i.op.startswith("s_cbranch") or i.op == "s_branch"):
            tgt = i.ops[0]
            if tgt not in labels: continue
            pre = [x for x in out[max(0, n - 60):n + 1] if x.cls != "none"]
            post = [x for x in out[labels[tgt]:labels[tgt] + 60] if x.cls != "none"]
            d0 = 0
            for ci, c in enumerate(post):
                dist = d0
                for p in reversed(pre):
                    k = need(p, c)
                    if k > dist:
                        raise RuntimeError(f"{name}: hazard across branch to {tgt}: '{p.text.strip()}' -> '{c.text.strip()}' need {k} have {dist}")
                    dist += p.states
                    if dist >= WIN: break
                d0 += c.states
                if d0 >= WIN or c.op in ("s_branch", "s_endpgm"): break
    return [i.text for i in out]

class K:
    def __init__(self, name):
        self.name = name; self.L = []
    def e(self, s):
        for l in s.split("\n"):
            l = l.strip()
            if not l: continue
            self.L.append(l if l.endswith(":") else "    " + l)
    def label(self, l): self.L.append(l + ":")
    def text(self, nv, ns, na=0):
        body = pad(self.L, self.name)
        mv = -1; ms = -1
        for t in body:
            i = Ins(t)
            for r in i.rd | i.wr:
                if r[0] == "v": mv = max(mv, r[1])
                if r[0] == "s" and isinstance(r[1], int): ms = max(ms, r[1])
        assert mv < nv, (self.name, mv, nv)
        assert ms < ns, (self.name, ms, ns)
        acc = (nv + 3) // 4 * 4
        code = f".globl {self.name}\n.p2align 8\n.type {self.name},@function\n{self.name}:\n" + "\n".join(body) + "\n"
        desc = f""".p2align 6
.amdhsa_kernel {self.name}
  .amdhsa_next_free_vgpr {acc + na if na else nv}
  .amdhsa_next_free_sgpr {ns}
  .amdhsa_accum_offset {acc}
  .amdhsa_group_segment_fixed_size 0
  .amdhsa_kernarg_size 88
  .amdhsa_user_sgpr_count 2
  .amdhsa_user_sgpr_kernarg_segment_ptr 1
  .amdhsa_system_sgpr_workgroup_id_x 1
.end_amdhsa_kernel
"""
        return code, desc

def vr(a, n=1): return f"v{a}" if n == 1 else f"v[{a}:{a+n-1}]"
def sr(a, n=1): return f"s{a}" if n == 1 else f"s[{a}:{a+n-1}]"
import struct
def f2u(x): return struct.unpack("<I", struct.pack("<f", x))[0]
def fh(x): return hex(f2u(x))
```

```python
import sys, math
from asmlib import *

NAME = "sequential_preLN__mha_block__mixer_token_mlp__prompt"
QF, KV, OF, HC, HT, UF, ST, WS_SIZE = 0, 0x200000, 0x600000, 0x800000, 0xA00000, 0xC00000, 0xE00000, 0xF00000
MF = "v_mfma_f32_32x32x16_bf16"
EPS = 1e-5
LOG2E = 1.4426950408889634

def srd(k, d, base, size):
    k.e(f"s_mov_b32 s{d}, s{base}\ns_mov_b32 s{d+1}, s{base+1}\ns_mov_b32 s{d+2}, {hex(size)}\ns_mov_b32 s{d+3}, 0x20000")

def xhalf_sum(k, v, t):
    k.e(f"v_mov_b32 v{t}, v{v}\nv_permlane32_swap_b32 v{v}, v{t}\nv_add_f32 v{v}, v{v}, v{t}")

def p1():
    k = K("qkv_kernel")
    XSL, WB, WSL, NS = 4096, 81920, 12288, 5
    k.e(f"""
    s_cmp_ge_u32 s2, 256
    s_cbranch_scc1 L1_end
    s_load_dwordx4 s[4:7], s[0:1], 0
    s_load_dwordx2 s[8:9], s[0:1], 80
    v_lshrrev_b32 v30, 6, v0
    v_and_b32 v1, 63, v0
    s_and_b32 s24, s2, 7
    v_readfirstlane_b32 s3, v30
    s_lshr_b32 s25, s2, 3
    s_lshr_b32 s26, s24, 1
    s_lshl_b32 s26, s26, 2
    s_and_b32 s27, s25, 3
    s_add_u32 s26, s26, s27          ; mblock
    s_and_b32 s27, s24, 1
    s_lshl_b32 s27, s27, 3
    s_lshr_b32 s28, s25, 2
    s_add_u32 s27, s27, s28          ; head
    s_lshl_b32 s28, s26, 2
    s_add_u32 s28, s28, s3
    """)
    k.e(f"""
    v_lshrrev_b32 v30, 3, v1
    v_mul_u32_u24 v30, 896, v30
    v_lshrrev_b32 v31, 4, v1
    v_and_b32 v29, 7, v1
    v_xor_b32 v31, v31, v29
    v_lshl_add_u32 v2, v31, 4, v30
    v_xor_b32 v31, 4, v31
    v_lshl_add_u32 v3, v31, 4, v30
    v_add_u32 v3, {7168-1024}, v3
    v_add_u32 v4, {2*(7168-1024)}, v2
    v_add_u32 v5, {2*(7168-1024)}, v3
    """)
    for i in range(3):
        k.e(f"""
        v_add_u32 v29, {64*i}, v1
        v_mul_u32_u24 v30, 171, v29
        v_lshrrev_b32 v30, 11, v30          ; row
        v_mul_u32_u24 v31, 12, v30
        v_sub_u32 v29, v29, v31             ; c
        v_mul_u32_u24 v30, 2688, v30
        v_lshrrev_b32 v31, 2, v29
        v_mul_u32_u24 v31, 896, v31
        v_and_b32 v29, 3, v29
        v_lshl_add_u32 v29, v29, 4, v31
        v_add_u32 v{6+i}, v29, v30
        """)
        if i: k.e(f"v_subrev_u32 v{6+i}, {1024*i}, v{6+i}")
    k.e(f"""
    s_mul_i32 s29, s28, {32*896}
    s_mul_i32 s30, s27, 56
    s_and_b32 s30, s30, 0xfff0
    s_mul_i32 s31, s3, {16*2688}
    s_add_u32 s30, s30, s31
    s_mul_i32 s31, s3, {NS*XSL}
    s_mul_i32 s32, s3, 3072
    s_add_u32 s32, s32, {WB}
    s_waitcnt lgkmcnt(0)
    """)
    srd(k, 12, 4, 2048*896); srd(k, 16, 6, 448*2688)
    def dma(c):
        sl = c % NS
        k.e(f"s_add_u32 m0, s31, {sl*XSL}\ns_add_u32 s33, s29, {c*128}")
        for i in range(4):
            k.e(f"buffer_load_dwordx4 v{2+i}, s[12:15], s33 offen offset:{1024*i} lds")
        k.e(f"s_add_u32 m0, s32, {sl*WSL}\ns_add_u32 s33, s30, {c*64*2688}")
        for i in range(3):
            k.e(f"buffer_load_dwordx4 v{6+i}, s[16:19], s33 offen offset:{1024*i} lds")
    for c in range(NS): dma(c)
    srd(k, 20, 8, WS_SIZE)
    k.e(f"""
    v_and_b32 v29, 31, v1               ; row
    v_lshrrev_b32 v28, 5, v1            ; hh
    v_bfe_u32 v30, v1, 1, 3             ; swz
    v_xor_b32 v30, v30, v28
    v_lshlrev_b32 v30, 4, v30
    v_lshl_add_u32 v30, v29, 7, v30
    v_add_u32 v9, s31, v30
    v_xor_b32 v10, 32, v9
    v_xor_b32 v11, 64, v9
    v_xor_b32 v12, 0x60, v9
    v_bfe_u32 v30, v1, 2, 2             ; r
    v_lshl_add_u32 v30, v28, 3, v30     ; 8hh + r
    v_mul_u32_u24 v30, 192, v30
    v_bfe_u32 v31, v1, 4, 1
    v_lshl_add_u32 v30, v31, 5, v30
    v_and_b32 v31, 3, v1
    v_lshl_add_u32 v30, v31, 3, v30
    s_and_b32 s33, s27, 1
    s_lshl_b32 s33, s33, 3
    s_add_u32 s33, s33, {WB}
    v_add_u32 v13, s33, v30
    v_mov_b32 v26, 0x3f803f80
    """)
    for r in list(range(16, 26)) + list(range(32, 80)): k.e(f"v_mov_b32 v{r}, 0")
    k.e(f"""
    s_cmp_ge_u32 s2, 4
    s_cbranch_scc1 L1_nz
    s_lshl_b32 s33, s2, 12
    s_add_u32 s33, s33, {hex(ST)}
    v_lshlrev_b32 v30, 4, v0
    buffer_store_dwordx4 v[32:35], v30, s[20:23], s33 offen
    s_waitcnt vmcnt(0)
    L1_nz:
    """)
    def fr(s): return 80 + 16*(s % 2)
    def reads(s):
        c, t = divmod(s, 4); sl = c % NS; b = fr(s)
        k.e(f"ds_read_b128 {vr(b,4)}, v{9+t} offset:{sl*XSL}")
        for g in range(3):
            for h in range(2):
                k.e(f"ds_read_b64_tr_b16 {vr(b+4+4*g+2*h,2)}, v13 offset:{sl*WSL + t*3072 + g*64 + h*768}")
    def compute(s):
        b = fr(s)
        x = vr(b, 4)
        k.e(f"{MF} v[32:47], {vr(b+4,4)}, {x}, v[32:47]")
        for q in range(4):
            k.e(f"v_dot2_f32_bf16 v{16+q%2}, v{b+q}, v26, v{16+q%2}")
            k.e(f"v_dot2_f32_bf16 v{18+q%2}, v{b+q}, v{b+q}, v{18+q%2}")
        k.e(f"{MF} v[48:63], {vr(b+8,4)}, {x}, v[48:63]")
        for q in range(4):
            k.e(f"v_dot2_f32_bf16 v{20+q%2}, v{b+4+q}, v26, v{20+q%2}")
            k.e(f"v_dot2_f32_bf16 v{22+q%2}, v{b+8+q}, v26, v{22+q%2}")
        k.e(f"{MF} v[64:79], {x}, {vr(b+12,4)}, v[64:79]")
        for q in range(4):
            k.e(f"v_dot2_f32_bf16 v{24+q%2}, v{b+12+q}, v26, v{24+q%2}")
    vmw = {0: 28, 1: 21, 2: 21, 3: 21, 4: 14, 5: 7, 6: 0}
    k.e(f"s_waitcnt vmcnt({vmw[0]})\ns_barrier")
    reads(0)
    for s in range(28):
        c, t = divmod(s, 4)
        if s + 1 < 28:
            if t == 3:
                k.e(f"s_waitcnt vmcnt({vmw[c+1]}) lgkmcnt(0)\ns_barrier")
                reads(s + 1)
                if c + NS < 7: dma(c + NS)
            else:
                reads(s + 1)
                k.e("s_waitcnt lgkmcnt(7)")
        else:
            k.e("s_waitcnt lgkmcnt(0)")
        compute(s)
    for a in (16, 18, 20, 22, 24): k.e(f"v_add_f32 v{a}, v{a}, v{a+1}")
    for a in (16, 18, 20, 22, 24): k.e(f"v_mov_b32 v{a+1}, v{a}")
    for a in (16, 18, 20, 22, 24): k.e(f"v_permlane32_swap_b32 v{a}, v{a+1}")
    for a in (16, 18, 20, 22, 24): k.e(f"v_add_f32 v{a}, v{a}, v{a+1}")
    k.e(f"""
    s_mov_b32 s34, 0
    s_mov_b32 s35, -1
    s_mov_b32 s36, 0xf0000000
    s_mov_b32 s37, 0xf0000000
    v_mul_f32 v16, {fh(-1/448)}, v16    ; -mu
    v_mul_f32 v18, {fh(1/448)}, v18
    v_fma_f32 v18, -v16, v16, v18       ; var
    v_max_f32 v18, 0, v18
    v_add_f32 v18, {fh(EPS)}, v18
    v_rsq_f32 v18, v18                  ; r
    v_cvt_pk_bf16_f32 v80, v16, v16
    v_and_b32 v17, 0xffff0000, v80
    v_sub_f32 v17, v16, v17
    v_cvt_pk_bf16_f32 v81, v17, 0
    v_cndmask_b32 v80, v80, 0, s[34:35]
    v_cndmask_b32 v81, v81, 0, s[34:35]
    v_mov_b32 v82, 0
    v_mov_b32 v83, 0
    """)
    for g in range(3):
        cs = 20 + 2*g; w = 84 + 4*g
        k.e(f"""
        v_cvt_pk_bf16_f32 v{w+1}, v{cs}, 0
        v_lshlrev_b32 v{cs+1}, 16, v{w+1}
        v_sub_f32 v{cs+1}, v{cs}, v{cs+1}
        v_cvt_pk_bf16_f32 v{w}, v{cs}, v{cs+1}
        v_mov_b32 v{w+2}, 0
        v_mov_b32 v{w+3}, 0
        """)
    k.e(f"""
    {MF} v[32:47], v[84:87], v[80:83], v[32:47]
    {MF} v[48:63], v[88:91], v[80:83], v[48:63]
    {MF} v[64:79], v[80:83], v[92:95], v[64:79]
    v_cvt_pk_bf16_f32 v96, v18, v18
    v_and_b32 v17, 0xffff0000, v96
    v_sub_f32 v17, v18, v17
    v_cvt_pk_bf16_f32 v96, v18, v17
    v_cndmask_b32 v96, v96, 0, s[34:35]
    v_mov_b32 v97, 0
    v_mov_b32 v98, 0
    v_mov_b32 v99, 0
    v_mov_b32 v100, v26
    v_mov_b32 v101, 0
    v_mov_b32 v102, 0
    v_mov_b32 v103, 0
    {MF} v[112:127], v[96:99], v[100:103], 0
    v_mul_f32 v19, {fh(28**-0.5*LOG2E)}, v18
    v_lshlrev_b32 v2, 4, v1
    s_lshl_b32 s33, s27, 6
    s_add_u32 s33, s33, s28
    s_lshl_b32 s38, s33, 11
    s_lshl_b32 s39, s33, 12
    s_add_u32 s39, s39, {hex(KV)}
    v_and_b32 v3, 31, v1
    v_cmp_eq_u32 vcc, 28, v3
    v_cndmask_b32 v3, 0, v26, vcc
    """)
    for (a, sc, so, off) in ((32, 19, 38, 0), (48, 18, 39, 0)):
        for r in range(16): k.e(f"v_mul_f32 v{a+r}, v{a+r}, v{sc}")
        o = 104 if a == 32 else 84
        for q in range(8): k.e(f"v_cvt_pk_bf16_f32 v{o+q}, v{a+2*q}, v{a+2*q+1}")
        k.e(f"v_cndmask_b32 v{o+6}, v{o+6}, 0, s[34:35]\nv_cndmask_b32 v{o+7}, v{o+7}, 0, s[34:35]")
        k.e(f"buffer_store_dwordx4 {vr(o,4)}, v2, s[20:23], s{so} offen offset:{off}")
        k.e(f"buffer_store_dwordx4 {vr(o+4,4)}, v2, s[20:23], s{so} offen offset:{off+1024}")
    for r in range(16): k.e(f"v_mul_f32 v{64+r}, v{64+r}, v{112+r}")
    for q in range(8): k.e(f"v_cvt_pk_bf16_f32 v{92+q}, v{64+2*q}, v{64+2*q+1}")
    for q in range(8): k.e(f"v_cndmask_b32 v{92+q}, v{92+q}, v3, s[36:37]")
    k.e(f"buffer_store_dwordx4 v[92:95], v2, s[20:23], s39 offen offset:2048")
    k.e(f"buffer_store_dwordx4 v[96:99], v2, s[20:23], s39 offen offset:3072")
    k.e("L1_end:\ns_endpgm")
    return k.text(128, 48), f"; @launch kernel=qkv_kernel grid=(256,1,1) block=(256,1,1) lds={WB + NS*WSL + 64}"

def p2():
    k = K("attn_kernel")
    QA, QB, OA, OB, SA, SB, T, P, KVB = 8, 16, 24, 40, 56, 72, 88, 96, 104
    k.e(f"""
    s_cmp_ge_u32 s2, 256
    s_cbranch_scc1 L2_end
    s_load_dwordx2 s[8:9], s[0:1], 80
    v_lshrrev_b32 v3, 6, v0
    v_and_b32 v1, 63, v0
    s_and_b32 s24, s2, 7
    v_readfirstlane_b32 s3, v3          ; wave
    s_lshr_b32 s25, s2, 3
    s_lshl_b32 s27, s24, 1
    s_and_b32 s26, s25, 1
    s_add_u32 s27, s27, s26             ; head
    s_lshr_b32 s26, s25, 1              ; q block
    v_lshlrev_b32 v2, 4, v1
    s_and_b32 s28, s3, 1                ; qp
    s_lshr_b32 s29, s3, 1               ; kh
    s_lshl_b32 s30, s26, 2
    s_lshl_b32 s31, s28, 1
    s_add_u32 s30, s30, s31
    s_add_u32 s31, s30, s29             ; q tile A
    s_xor_b32 s30, s31, 1               ; q tile B
    s_lshl_b32 s32, s27, 6
    s_add_u32 s33, s32, s31
    s_lshl_b32 s33, s33, 11
    s_add_u32 s34, s32, s30
    s_lshl_b32 s34, s34, 11
    s_lshl_b32 s35, s32, 12
    s_add_u32 s35, s35, {hex(KV)}
    s_lshl_b32 s36, s29, 17
    s_add_u32 s36, s36, s35
    s_waitcnt lgkmcnt(0)
    """)
    srd(k, 20, 8, WS_SIZE)
    def ld(dst, so, off): k.e(f"buffer_load_dwordx4 {vr(dst,4)}, v2, s[20:23], s{so} offen offset:{off}")
    ld(QA, 33, 0); ld(QA+4, 33, 1024); ld(KVB, 36, 0); ld(KVB+4, 36, 1024)
    ld(QB, 34, 0); ld(QB+4, 34, 1024); ld(KVB+8, 36, 2048); ld(KVB+12, 36, 3072)
    for t in (1, 2):
        k.e("s_add_u32 s36, s36, 4096")
        for q in range(4): ld(KVB+16*t+4*q, 36, 1024*q)
    k.e("s_add_u32 s36, s36, 4096")
    for r in list(range(OA, OB+16)) + list(range(T, P+8)) + list(range(KVB+60, KVB+64)): k.e(f"v_mov_b32 v{r}, 0")
    k.e(f"""
    s_mov_b32 s37, 8
    s_waitcnt vmcnt(12)
    {MF} {vr(SA,16)}, {vr(KVB,4)}, {vr(QA,4)}, 0
    {MF} {vr(SA,16)}, {vr(KVB+4,4)}, {vr(QA+4,4)}, {vr(SA,16)}
    s_waitcnt vmcnt(8)
    s_nop 9
    L2_loop:
    """)
    def half(mf, slots, S):
        for g in range(4):
            k.e(mf[g])
            if slots[g]: k.e(slots[g])
            e = lambda i: f"v_exp_f32 v{T+i%8}, v{S+i}"
            c = lambda p: f"v_cvt_pk_bf16_f32 v{P+p%8}, v{T+(2*p)%8}, v{T+(2*p+1)%8}"
            k.e("\n".join([e(4*g), e(4*g+1), c(2*g-1), e(4*g+2), c(2*g), e(4*g+3)]))
    for t in range(4):
        b = KVB + 16*t; bp = KVB + 16*((t-1) % 4); bn = KVB + 16*((t+1) % 4)
        lds = lambda q: f"buffer_load_dwordx4 {vr(bp+4*q,4)}, v2, s[20:23], s36 offen offset:{1024*q}"
        half([f"{MF} {vr(SB,16)}, {vr(b,4)}, {vr(QB,4)}, 0",
              f"{MF} {vr(OB,16)}, {vr(bp+12,4)}, {vr(P+4,4)}, {vr(OB,16)}",
              f"{MF} {vr(SB,16)}, {vr(b+4,4)}, {vr(QB+4,4)}, {vr(SB,16)}",
              f"{MF} {vr(OA,16)}, {vr(b+8,4)}, {vr(P,4)}, {vr(OA,16)}"],
             [lds(0), lds(1), lds(2), "s_waitcnt vmcnt(7)"], SA)
        half([f"{MF} {vr(SA,16)}, {vr(bn,4)}, {vr(QA,4)}, 0",
              f"{MF} {vr(OA,16)}, {vr(b+12,4)}, {vr(P+4,4)}, {vr(OA,16)}",
              f"{MF} {vr(SA,16)}, {vr(bn+4,4)}, {vr(QA+4,4)}, {vr(SA,16)}",
              f"{MF} {vr(OB,16)}, {vr(b+8,4)}, {vr(P,4)}, {vr(OB,16)}"],
             [lds(3), "s_add_u32 s36, s36, 4096", "s_sub_u32 s37, s37, 1" if t == 3 else None, "s_cmp_lg_u32 s37, 0" if t == 3 else None], SB)
    k.e(f"""
    s_cbranch_scc1 L2_loop
    v_cvt_pk_bf16_f32 v{P+7}, v{T+6}, v{T+7}
    s_lshl_b32 s38, s3, 12
    v_add_u32 v3, s38, v2
    v_xor_b32 v4, 0x2000, v3
    {MF} {vr(OB,16)}, {vr(KVB+60,4)}, {vr(P+4,4)}, {vr(OB,16)}
    v_lshrrev_b32 v5, 5, v1             ; hh
    s_mul_i32 s38, s27, 7
    v_add_u32 v5, s38, v5               ; G0
    v_lshrrev_b32 v6, 1, v5
    v_lshlrev_b32 v6, 9, v6
    v_and_b32 v5, 1, v5
    v_lshl_add_u32 v6, v5, 3, v6
    v_and_b32 v5, 31, v1
    v_lshl_add_u32 v6, v5, 4, v6
    s_mul_i32 s38, s31, 28672
    s_add_u32 s38, s38, {hex(OF)}
    """)
    for q in range(4): k.e(f"ds_write_b128 v3, {vr(OB+4*q,4)} offset:{1024*q}")
    k.e("s_waitcnt vmcnt(0) lgkmcnt(0)\ns_barrier")
    for q in range(4): k.e(f"ds_read_b128 {vr(SB+4*q,4)}, v4 offset:{1024*q}")
    for q in range(4):
        k.e(f"s_waitcnt lgkmcnt({3-q})")
        for r in range(4): k.e(f"v_add_f32 v{OA+4*q+r}, v{OA+4*q+r}, v{SB+4*q+r}")
    k.e(f"""
    v_mov_b32 v7, v{OA+12}
    v_mov_b32 v5, v{OA+12}
    v_mul_f32 v4, 0, v{OA}
    """)
    for r in range(1, 16): k.e(f"v_fmac_f32 v4, 0, v{OA+r}")
    k.e(f"""
    v_permlane32_swap_b32 v5, v7        ; v7 = l
    s_mov_b32 s40, {fh(2.0**60)}
    s_mov_b32 s41, {fh(2.0**-60)}
    v_add_f32 v5, v7, v4
    v_cmp_nle_f32 vcc, v5, s40
    v_cmp_nge_f32 s[42:43], v5, s41
    s_or_b64 vcc, vcc, s[42:43]
    s_cbranch_vccnz L2_slow
    L2_fin:
    v_rcp_f32 v7, v7
    """)
    for r in range(16): k.e(f"v_mul_f32 v{OA+r}, v{OA+r}, v7")
    for q in range(8): k.e(f"v_cvt_pk_bf16_f32 v{P+q}, v{OA+2*q}, v{OA+2*q+1}")
    for a in range(3): k.e(f"buffer_store_dwordx2 {vr(P+2*a,2)}, v6, s[20:23], s38 offen offset:{512*a}")
    k.e(f"""
    s_mov_b32 exec_hi, 0
    buffer_store_dwordx2 {vr(P+6,2)}, v6, s[20:23], s38 offen offset:1536
    L2_end:
    s_endpgm
    """)
    k.e(f"""
    L2_slow:
    s_mov_b32 s36, s35
    s_mov_b32 s37, 64
    v_mov_b32 v7, 0xff800000
    L2_s1:
    """)
    ld(KVB, 36, 0); ld(KVB+4, 36, 1024)
    k.e(f"""
    s_waitcnt vmcnt(0)
    {MF} {vr(SA,16)}, {vr(KVB,4)}, {vr(QA,4)}, 0
    {MF} {vr(SA,16)}, {vr(KVB+4,4)}, {vr(QA+4,4)}, {vr(SA,16)}
    s_add_u32 s36, s36, 4096
    """)
    for q in range(8): k.e(f"v_max3_f32 v7, v7, v{SA+2*q}, v{SA+2*q+1}")
    k.e(f"""
    s_sub_u32 s37, s37, 1
    s_cmp_lg_u32 s37, 0
    s_cbranch_scc1 L2_s1
    v_mov_b32 v5, v7
    v_permlane32_swap_b32 v5, v7
    v_max_f32 v7, v5, v7
    """)
    for r in range(16): k.e(f"v_sub_f32 v{SB+r}, 0, v7\nv_mov_b32 v{OA+r}, 0")
    k.e(f"""
    s_mov_b32 s36, s35
    s_mov_b32 s37, 64
    L2_s2:
    """)
    for q in range(4): ld(KVB+4*q, 36, 1024*q)
    k.e(f"""
    s_waitcnt vmcnt(0)
    {MF} {vr(SA,16)}, {vr(KVB,4)}, {vr(QA,4)}, {vr(SB,16)}
    {MF} {vr(SA,16)}, {vr(KVB+4,4)}, {vr(QA+4,4)}, {vr(SA,16)}
    s_add_u32 s36, s36, 4096
    """)
    for r in range(16): k.e(f"v_exp_f32 v{SA+r}, v{SA+r}")
    for q in range(8): k.e(f"v_cvt_pk_bf16_f32 v{P+q}, v{SA+2*q}, v{SA+2*q+1}")
    k.e(f"""
    {MF} {vr(OA,16)}, {vr(KVB+8,4)}, {vr(P,4)}, {vr(OA,16)}
    {MF} {vr(OA,16)}, {vr(KVB+12,4)}, {vr(P+4,4)}, {vr(OA,16)}
    s_sub_u32 s37, s37, 1
    s_cmp_lg_u32 s37, 0
    s_cbranch_scc1 L2_s2
    v_mov_b32 v7, v{OA+12}
    v_mov_b32 v5, v{OA+12}
    v_permlane32_swap_b32 v5, v7
    s_branch L2_fin
    """)
    return k.text(168, 48), f"; @launch kernel=attn_kernel grid=(256,1,1) block=(256,1,1) lds=16384"

def tr_addr(k, dst, rowsel, t0, t1):
    sh = {8: 3, 4: 2}[rowsel]
    k.e(f"""
    v_lshrrev_b32 v{t0}, 5, v1
    v_bfe_u32 v{t1}, v1, 2, 2
    v_lshl_add_u32 v{t0}, v{t0}, {sh}, v{t1}
    v_lshlrev_b32 v{dst}, 7, v{t0}
    v_bfe_u32 v{t0}, v1, 3, 1
    v_lshl_add_u32 v{dst}, v{t0}, 6, v{dst}
    v_bfe_u32 v{t0}, v1, 4, 1
    v_lshl_add_u32 v{dst}, v{t0}, 5, v{dst}
    v_and_b32 v{t0}, 3, v1
    v_lshl_add_u32 v{dst}, v{t0}, 3, v{dst}
    """)
def dma_rows_off(k, dst, stride, t0, t1):
    k.e(f"""
    v_lshrrev_b32 v{t0}, 3, v1
    v_mul_u32_u24 v{dst}, {stride}, v{t0}
    v_bfe_u32 v{t0}, v1, 4, 1
    v_lshlrev_b32 v{t0}, 2, v{t0}
    v_and_b32 v{t1}, 7, v1
    v_xor_b32 v{t0}, v{t0}, v{t1}
    v_lshl_add_u32 v{dst}, v{t0}, 4, v{dst}
    """)

def p3():
    k = K("proj_kernel")
    WOB = 57344
    AV, AT, FR, XR, ID = 32, 48, 64, 96, 104
    k.e(f"""
    s_cmp_ge_u32 s2, 224
    s_cbranch_scc1 L3_end
    s_load_dwordx2 s[4:5], s[0:1], 0
    s_load_dwordx2 s[6:7], s[0:1], 16
    s_load_dwordx2 s[8:9], s[0:1], 80
    v_lshrrev_b32 v3, 6, v0
    v_and_b32 v1, 63, v0
    s_and_b32 s24, s2, 7
    v_readfirstlane_b32 s3, v3
    s_lshr_b32 s25, s2, 3
    s_lshl_b32 s26, s24, 2
    s_and_b32 s27, s25, 3
    s_add_u32 s26, s26, s27
    s_lshr_b32 s27, s25, 2
    v_lshlrev_b32 v2, 4, v1
    s_and_b32 s28, s3, 1                ; mi
    s_lshr_b32 s29, s3, 1               ; ni
    s_lshl_b32 s30, s26, 1
    s_add_u32 s30, s30, s28
    s_lshl_b32 s31, s27, 1
    s_add_u32 s31, s31, s29             ; d tile
    """)
    dma_rows_off(k, 4, 896, 5, 6)
    k.e(f"""
    s_mul_i32 s32, s30, 28672
    s_add_u32 s32, s32, {hex(OF)}
    s_mul_i32 s33, s28, 28672
    s_mul_i32 s34, s28, {56*896}
    s_lshl_b32 s35, s27, 7
    s_add_u32 s34, s34, s35
    s_mul_i32 s35, s28, {56*128}
    s_add_u32 s35, s35, {WOB}
    s_waitcnt lgkmcnt(0)
    """)
    srd(k, 20, 8, WS_SIZE); srd(k, 16, 6, 448*896); srd(k, 12, 4, 2048*896)
    k.e("s_cmp_ge_u32 s3, 2\ns_cbranch_scc1 L3_wo")
    for n in range(28):
        if n % 4 == 0: k.e(f"s_add_u32 m0, s33, {n*1024}\ns_add_u32 s36, s32, {n*1024}")
        k.e(f"buffer_load_dwordx4 v2, s[20:23], s36 offen offset:{(n%4)*1024} lds")
    k.e("s_branch L3_go\nL3_wo:")
    for c in range(4):
        for i in range(7):
            row = 112*c + 8*i
            k.e(f"s_add_u32 m0, s35, {row*128}\ns_add_u32 s36, s34, {row*896}")
            k.e(f"buffer_load_dwordx4 v4, s[16:19], s36 offen lds")
    k.e(f"""
    L3_go:
    v_and_b32 v5, 31, v1
    v_lshrrev_b32 v6, 5, v1
    v_mul_u32_u24 v7, 896, v5
    v_lshl_add_u32 v7, v6, 4, v7
    s_mul_i32 s36, s30, {32*896}
    s_lshl_b32 s37, s31, 6
    s_add_u32 s36, s36, s37
    buffer_load_dwordx4 {vr(XR,4)}, v7, s[12:15], s36 offen
    buffer_load_dwordx4 {vr(XR+4,4)}, v7, s[12:15], s36 offen offset:32
    v_add_u32 v8, s33, v2
    """)
    tr_addr(k, 9, 8, 10, 11)
    k.e(f"""
    s_lshl_b32 s37, s29, 6
    v_xor_b32 v9, s37, v9
    v_add_u32 v9, {WOB}, v9
    v_lshlrev_b32 v6, 3, v6
    v_sub_u32 v5, v5, v6                ; n - 8hh
    v_mov_b32 v10, 0x3f80
    v_mov_b32 v11, 0x3f800000
    """)
    for t in range(2):
        for q in range(4):
            j = 16*t + 2*q
            k.e(f"""
            v_cmp_eq_u32 vcc, {j}, v5
            v_cndmask_b32 v{ID+4*t+q}, 0, v10, vcc
            v_cmp_eq_u32 vcc, {j+1}, v5
            v_cndmask_b32 v{ID+4*t+q}, v{ID+4*t+q}, v11, vcc
            """)
    def reads(s):
        if s % 7 == 0:
            k.e(f"s_waitcnt vmcnt({2 + 7*(3 - s//7)})\ns_barrier")
        b = FR + 8*(s % 4)
        k.e(f"ds_read_b128 {vr(b,4)}, v8 offset:{s*1024}")
        k.e(f"ds_read_b64_tr_b16 {vr(b+4,2)}, v9 offset:{s*2048}")
        k.e(f"ds_read_b64_tr_b16 {vr(b+6,2)}, v9 offset:{s*2048+512}")
    reads(0); reads(1)
    for s in range(28):
        if s + 2 < 28: reads(s + 2)
        k.e(f"s_waitcnt lgkmcnt({min(6, 3*(27-s))})")
        b = FR + 8*(s % 4)
        cV = vr(AV,16) if s else "0"; cT = vr(AT,16) if s else "0"
        k.e(f"{MF} {vr(AV,16)}, {vr(b,4)}, {vr(b+4,4)}, {cV}")
        k.e(f"{MF} {vr(AT,16)}, {vr(b+4,4)}, {vr(b,4)}, {cT}")
    k.e("s_waitcnt vmcnt(0)")
    for t in range(2):
        k.e(f"{MF} {vr(AV,16)}, {vr(XR+4*t,4)}, {vr(ID+4*t,4)}, {vr(AV,16)}")
        k.e(f"{MF} {vr(AT,16)}, {vr(ID+4*t,4)}, {vr(XR+4*t,4)}, {vr(AT,16)}")
    k.e(f"""
    s_lshl_b32 s36, s31, 6
    s_add_u32 s36, s36, s30
    s_lshl_b32 s36, s36, 11
    s_add_u32 s36, s36, {hex(HT)}
    s_mul_i32 s37, s30, 14
    s_add_u32 s37, s37, s31
    s_lshl_b32 s37, s37, 11
    s_add_u32 s37, s37, {hex(HC)}
    s_lshl_b32 s38, s30, 7
    s_add_u32 s38, s38, {hex(ST)}
    v_and_b32 v5, 31, v1
    v_lshrrev_b32 v6, 5, v1
    v_lshlrev_b32 v6, 13, v6
    v_lshl_add_u32 v6, v5, 2, v6
    """)
    for q in range(8): k.e(f"v_cvt_pk_bf16_f32 v{FR+q}, v{AV+2*q}, v{AV+2*q+1}")
    k.e(f"buffer_store_dwordx4 {vr(FR,4)}, v2, s[20:23], s36 offen\nbuffer_store_dwordx4 {vr(FR+4,4)}, v2, s[20:23], s36 offen offset:1024")
    k.e(f"v_add_f32 v10, v{AT}, v{AT+1}\nv_mul_f32 v11, v{AT}, v{AT}\nv_mul_f32 v12, v{AT+1}, v{AT+1}\nv_add_f32 v13, v{AT+2}, v{AT+3}")
    for r in range(2, 16):
        k.e(f"v_fmac_f32 v{11+r%2}, v{AT+r}, v{AT+r}")
        if r >= 4: k.e(f"v_add_f32 v{10 if r%2 else 13}, v{10 if r%2 else 13}, v{AT+r}")
    k.e(f"v_add_f32 v10, v10, v13\nv_add_f32 v11, v11, v12")
    for q in range(8): k.e(f"v_cvt_pk_bf16_f32 v{FR+8+q}, v{AT+2*q}, v{AT+2*q+1}")
    k.e(f"""
    v_permlane32_swap_b32 v10, v11
    v_add_f32 v10, v10, v11
    buffer_atomic_add_f32 v10, v6, s[20:23], s38 offen
    buffer_store_dwordx4 {vr(FR+8,4)}, v2, s[20:23], s37 offen
    buffer_store_dwordx4 {vr(FR+12,4)}, v2, s[20:23], s37 offen offset:1024
    L3_end:
    s_endpgm
    """)
    return k.text(112, 48), f"; @launch kernel=proj_kernel grid=(224,1,1) block=(256,1,1) lds={2*WOB}"

def reduce4(k, ACC, RED, t0):
    for sp in range(1, 4):
        k.e(f"s_xor_b32 s40, s3, {sp}\ns_mul_i32 s40, s40, {3*4096}\ns_add_u32 s40, s40, {RED + (sp-1)*4096}\nv_add_u32 v{t0+sp}, s40, v2")
    k.e(f"s_mul_i32 s40, s3, {3*4096}\ns_add_u32 s40, s40, {RED}\nv_add_u32 v{t0}, s40, v2")
    for sp in range(1, 4):
        for q in range(4): k.e(f"ds_write_b128 v{t0+sp}, {vr(ACC+16*sp+4*q,4)} offset:{1024*q}")
    k.e("s_waitcnt lgkmcnt(0)\ns_barrier")
    for sp in range(1, 4):
        for q in range(4): k.e(f"ds_read_b128 {vr(ACC+16*sp+4*q,4)}, v{t0} offset:{(sp-1)*4096+1024*q}")
    for sp in range(1, 4):
        k.e(f"s_waitcnt lgkmcnt({4*(3-sp)})")
        for r in range(16): k.e(f"v_add_f32 v{ACC+r}, v{ACC+r}, v{ACC+16*sp+r}")

def p4():
    k = K("mlp1_kernel")
    D = 8
    RING, TAB, RED = 0, 65536, 81920
    ACC, RAW, HN, WF, SC, TMP, BI = 32, 96, 160, 176, 192, 224, 240
    k.e(f"""
    s_and_b32 s24, s2, 7
    s_lshr_b32 s25, s2, 3
    s_mul_i32 s26, s24, 49
    s_add_u32 s27, s26, 50
    s_add_u32 s26, s26, 1
    s_lshr_b32 s26, s26, 1
    s_lshr_b32 s27, s27, 1
    s_add_u32 s26, s26, s25             ; tile
    s_cmp_ge_u32 s26, s27
    s_cbranch_scc1 L4_end
    s_load_dwordx4 s[4:7], s[0:1], 32
    s_load_dwordx2 s[8:9], s[0:1], 80
    v_lshrrev_b32 v3, 6, v0
    v_and_b32 v1, 63, v0
    s_mul_i32 s27, s26, 9363
    v_readfirstlane_b32 s3, v3
    s_lshr_b32 s27, s27, 16
    s_mul_i32 s28, s27, 7
    s_sub_u32 s26, s26, s28             ; mt
    v_lshlrev_b32 v2, 4, v1
    s_and_b32 s28, s3, 1
    s_lshr_b32 s29, s3, 1
    s_lshl_b32 s30, s26, 1
    s_add_u32 s30, s30, s28
    s_lshl_b32 s31, s27, 1
    s_add_u32 s31, s31, s29
    s_lshl_b32 s32, s30, 17
    s_lshl_b32 s33, s3, 15
    s_add_u32 s33, s33, {hex(HT)}
    s_add_u32 s32, s32, s33
    s_xor_b32 s34, s30, 1
    s_lshl_b32 s34, s34, 17
    s_add_u32 s33, s34, s33
    s_mul_i32 s34, s3, {512*3584}
    s_lshl_b32 s35, s27, 7
    s_add_u32 s34, s34, s35             ; w1 src
    s_lshl_b32 s35, s3, 14
    """)
    dma_rows_off(k, 4, 3584, 6, 7)
    k.e(f"""
    v_add_u32 v5, {8*3584-1024}, v4
    v_lshrrev_b32 v6, 1, v1
    v_lshlrev_b32 v6, 6, v6
    v_and_b32 v7, 1, v1
    v_lshl_add_u32 v6, v7, 4, v6
    s_lshl_b32 s36, s3, 11
    s_add_u32 s36, s36, {hex(ST)}
    s_add_u32 s37, s36, 8192
    v_lshrrev_b32 v7, 5, v1
    v_lshlrev_b32 v7, 3, v7
    s_lshl_b32 s38, s31, 6
    s_waitcnt lgkmcnt(0)
    """)
    srd(k, 20, 8, WS_SIZE); srd(k, 12, 4, 2048*3584); srd(k, 16, 6, 1792*2); srd(k, 44, 8, WS_SIZE)
    k.e(f"""
    buffer_load_dwordx4 {vr(SC,4)}, v6, s[20:23], s36 offen
    buffer_load_dwordx4 {vr(SC+4,4)}, v6, s[20:23], s36 offen offset:32
    buffer_load_dwordx4 {vr(SC+8,4)}, v6, s[20:23], s37 offen
    buffer_load_dwordx4 {vr(SC+12,4)}, v6, s[20:23], s37 offen offset:32
    """)
    for q in range(4): k.e(f"buffer_load_dwordx2 {vr(BI+2*q,2)}, v7, s[16:19], s38 offen offset:{16*q}")
    def loads(s):
        sl = s % D
        k.e(f"s_add_u32 m0, s35, {sl*2048}")
        k.e(f"buffer_load_dwordx4 {vr(RAW+8*sl,4)}, v2, s[44:47], s32 offen offset:{(s%4)*1024}")
        k.e(f"buffer_load_dwordx4 v4, s[12:15], s34 offen lds")
        k.e(f"buffer_load_dwordx4 {vr(RAW+8*sl+4,4)}, v2, s[44:47], s33 offen offset:{(s%4)*1024}")
        k.e(f"buffer_load_dwordx4 v5, s[12:15], s34 offen offset:1024 lds")
        k.e(f"s_add_u32 s34, s34, {16*3584}")
        if s % 4 == 3: k.e("s_add_u32 s32, s32, 4096\ns_add_u32 s33, s33, 4096")
    for s in range(D): loads(s)
    tr_addr(k, 8, 4, 10, 11)
    k.e(f"""
    s_lshl_b32 s39, s29, 6
    v_xor_b32 v8, s39, v8
    v_add_u32 v8, s35, v8
    v_xor_b32 v9, 64, v8
    s_lshl_b32 s39, s3, 12
    s_add_u32 s39, s39, {TAB}
    v_lshlrev_b32 v10, 6, v1
    v_add_u32 v10, s39, v10
    v_lshrrev_b32 v11, 5, v1
    v_lshlrev_b32 v11, 6, v11
    v_add_u32 v11, s39, v11
    """)
    for r in range(64): k.e(f"v_mov_b32 v{ACC+r}, 0")
    k.e(f"s_waitcnt vmcnt({4*D+4})\ns_mov_b32 s39, {fh(EPS)}")
    for j in range(8):
        m, e, t = SC+j, SC+8+j, TMP+j
        k.e(f"""
        v_mul_f32 v{m}, {fh(-1/448)}, v{m}
        v_mul_f32 v{e}, {fh(1/448)}, v{e}
        v_fma_f32 v{e}, -v{m}, v{m}, v{e}
        v_max_f32 v{e}, 0, v{e}
        v_add_f32 v{t}, s39, v{e}
        v_fma_f32 v{e}, v{t}, s39, v{e}
        v_rsq_f32 v{SC+16+j}, v{e}
        """)
    for j in range(8): k.e(f"v_mul_f32 v{SC+24+j}, v{SC+j}, v{SC+16+j}")
    for q in range(4): k.e(f"ds_write_b128 v10, {vr(SC+16+4*q,4)} offset:{16*q}")
    def streads(s, rel):
        b = SC + 16*(s % 2)
        for q in range(4): k.e(f"ds_read_b128 {vr(b+4*q,4)}, v11 offset:{rel*128+16*q}")
    def trreads(s):
        sl = s % D; b = WF + 8*(s % 2)
        for a in range(2):
            for h in range(2): k.e(f"ds_read_b64_tr_b16 {vr(b+4*a+2*h,2)}, v{8+a} offset:{sl*2048+h*1024}")
    def norm(s):
        L = []
        sl = s % D; sc = SC + 16*(s % 2)
        for b in range(2):
            for q in range(4):
                raw = RAW + 8*sl + 4*b + q; t = TMP + 2*((4*b+q) % 4)
                L.append([f"v_lshlrev_b32 v{t}, 16, v{raw}", f"v_and_b32 v{t+1}, 0xffff0000, v{raw}",
                          f"v_fma_f32 v{t}, v{t}, v{sc+2*q}, v{sc+8+2*q}", f"v_fma_f32 v{t+1}, v{t+1}, v{sc+2*q+1}, v{sc+8+2*q+1}",
                          f"v_cvt_pk_bf16_f32 v{HN+8*(s%2)+4*b+q}, v{t}, v{t+1}"])
        return L
    k.e("s_waitcnt lgkmcnt(0)")
    streads(0, 0); streads(1, 1)
    k.e(f"s_waitcnt vmcnt({4*D-4})")
    trreads(0)
    k.e("s_waitcnt lgkmcnt(8)")
    for g in norm(0): k.e("\n".join(g))
    k.e("s_mov_b32 s41, 4\nL4_loop:")
    k.e("s_cmp_eq_u32 s41, 1\ns_cselect_b32 s14, 0, s14\ns_cselect_b32 s46, 0, s46")
    for s in range(D):
        k.e(f"s_waitcnt vmcnt({4*(D-2)}) lgkmcnt(0)")
        trreads(s + 1); streads(s, s + 2)
        loads(s)
        N = norm(s + 1)
        for m in range(4):
            a, b = m // 2, m % 2
            k.e(f"{MF} {vr(ACC+16*m,16)}, {vr(WF+8*(s%2)+4*a,4)}, {vr(HN+8*(s%2)+4*b,4)}, {vr(ACC+16*m,16)}")
            g0, g1 = N[2*m], N[2*m+1]
            for x, y in zip(g0, g1): k.e(x + "\n" + y)
    k.e(f"v_add_u32 v11, {D*128}, v11\ns_sub_u32 s41, s41, 1\ns_cmp_lg_u32 s41, 0\ns_cbranch_scc1 L4_loop")
    k.e("s_waitcnt vmcnt(0) lgkmcnt(0)")
    reduce4(k, ACC, RED, 12)
    c0 = -2*math.sqrt(2/math.pi)*LOG2E
    k.e(f"s_mov_b32 s40, {fh(c0*0.044715)}\nv_mov_b32 v12, {fh(c0)}")
    for r in range(16):
        bsrc = BI + r // 2
        k.e(f"v_lshlrev_b32 v{TMP}, 16, v{bsrc}" if r % 2 == 0 else f"v_and_b32 v{TMP}, 0xffff0000, v{bsrc}")
        k.e(f"v_add_f32 v{ACC+r}, v{ACC+r}, v{TMP}")
    for r in range(16): k.e(f"v_mul_f32 v{ACC+16+r}, v{ACC+r}, v{ACC+r}")
    for r in range(16): k.e(f"v_fma_f32 v{ACC+16+r}, v{ACC+16+r}, s40, v12")
    for r in range(16): k.e(f"v_mul_f32 v{ACC+16+r}, v{ACC+16+r}, v{ACC+r}")
    for r in range(16): k.e(f"v_exp_f32 v{ACC+16+r}, v{ACC+16+r}")
    for r in range(16): k.e(f"v_add_f32 v{ACC+16+r}, 1.0, v{ACC+16+r}")
    for r in range(16): k.e(f"v_rcp_f32 v{ACC+16+r}, v{ACC+16+r}")
    for r in range(16): k.e(f"v_mul_f32 v{ACC+r}, v{ACC+r}, v{ACC+16+r}")
    for q in range(8): k.e(f"v_cvt_pk_bf16_f32 v{ACC+32+q}, v{ACC+2*q}, v{ACC+2*q+1}")
    k.e(f"""
    s_mul_i32 s40, s30, 56
    s_add_u32 s40, s40, s31
    s_lshl_b32 s40, s40, 11
    s_add_u32 s40, s40, {hex(UF)}
    buffer_store_dwordx4 {vr(ACC+32,4)}, v2, s[20:23], s40 offen
    buffer_store_dwordx4 {vr(ACC+36,4)}, v2, s[20:23], s40 offen offset:1024
    L4_end:
    s_endpgm
    """)
    return k.text(248, 48), f"; @launch kernel=mlp1_kernel grid=(200,1,1) block=(256,1,1) lds={RED + 12*4096}"

def p5():
    k = K("mlp2_kernel")
    D = 7
    RED = 4*D*2048
    ACC, RAW, WF, HR = 32, 96, 152, 168
    k.e(f"""
    s_cmp_ge_u32 s2, 224
    s_cbranch_scc1 L5_end
    s_load_dwordx4 s[4:7], s[0:1], 48
    s_load_dwordx2 s[10:11], s[0:1], 64
    s_load_dwordx2 s[8:9], s[0:1], 80
    v_lshrrev_b32 v3, 6, v0
    v_and_b32 v1, 63, v0
    s_and_b32 s24, s2, 7
    v_readfirstlane_b32 s3, v3
    s_lshr_b32 s25, s2, 3
    s_lshl_b32 s26, s24, 2
    s_and_b32 s27, s25, 3
    s_add_u32 s26, s26, s27
    s_lshr_b32 s27, s25, 2              ; d block
    v_lshlrev_b32 v2, 4, v1
    s_and_b32 s28, s3, 1
    s_lshr_b32 s29, s3, 1
    s_lshl_b32 s30, s27, 1
    s_add_u32 s30, s30, s29
    s_lshl_b32 s31, s26, 1
    s_add_u32 s31, s31, s28
    s_mul_i32 s33, s3, {28*1024}
    s_add_u32 s33, s33, {hex(UF)}
    s_mul_i32 s32, s30, {56*2048}
    s_add_u32 s32, s32, s33
    s_xor_b32 s34, s30, 1
    s_mul_i32 s34, s34, {56*2048}
    s_add_u32 s33, s34, s33
    s_mul_i32 s34, s3, {448*4096}
    s_lshl_b32 s35, s26, 7
    s_add_u32 s34, s34, s35             ; w2 src
    s_mul_i32 s35, s3, {D*2048}
    """)
    dma_rows_off(k, 4, 4096, 6, 7)
    k.e(f"""
    v_add_u32 v5, {8*4096-1024}, v4
    v_and_b32 v6, 31, v1
    v_lshlrev_b32 v7, 1, v6
    s_lshl_b32 s36, s31, 6
    s_mul_i32 s37, s31, 14
    s_add_u32 s37, s37, s30
    s_lshl_b32 s37, s37, 11
    s_add_u32 s37, s37, {hex(HC)}
    s_waitcnt lgkmcnt(0)
    """)
    srd(k, 44, 8, WS_SIZE); srd(k, 12, 4, 1792*4096); srd(k, 16, 6, 2048*2); srd(k, 20, 10, 2048*896)
    k.e(f"""
    buffer_load_ushort v16, v7, s[16:19], s36 offen
    buffer_load_dwordx4 {vr(HR,4)}, v2, s[44:47], s37 offen
    buffer_load_dwordx4 {vr(HR+4,4)}, v2, s[44:47], s37 offen offset:1024
    """)
    def loads(s):
        sl = s % D
        k.e(f"s_add_u32 m0, s35, {sl*2048}")
        o = (sl % 4)*1024
        k.e(f"buffer_load_dwordx4 {vr(RAW+8*sl,4)}, v2, s[44:47], s32 offen offset:{o}")
        k.e(f"buffer_load_dwordx4 v4, s[12:15], s34 offen lds")
        k.e(f"buffer_load_dwordx4 {vr(RAW+8*sl+4,4)}, v2, s[44:47], s33 offen offset:{o}")
        k.e(f"buffer_load_dwordx4 v5, s[12:15], s34 offen offset:1024 lds")
        k.e(f"s_add_u32 s34, s34, {16*4096}")
        if sl == 3: k.e("s_add_u32 s32, s32, 4096\ns_add_u32 s33, s33, 4096")
        if sl == D-1: k.e(f"s_add_u32 s32, s32, {(D-4)*1024}\ns_add_u32 s33, s33, {(D-4)*1024}")
    for s in range(D): loads(s)
    tr_addr(k, 8, 4, 10, 11)
    k.e(f"""
    s_lshl_b32 s39, s28, 6
    v_xor_b32 v8, s39, v8
    v_add_u32 v8, s35, v8
    v_xor_b32 v9, 64, v8
    v_mul_u32_u24 v6, 896, v6
    v_lshrrev_b32 v7, 5, v1
    v_lshl_add_u32 v6, v7, 4, v6
    s_mul_i32 s38, s31, {32*896}
    s_lshl_b32 s39, s30, 6
    s_add_u32 s38, s38, s39
    """)
    for r in range(64): k.e(f"v_mov_b32 v{ACC+r}, 0")
    def trreads(s, par):
        sl = s % D; b = WF + 8*par
        for a in range(2):
            for h in range(2): k.e(f"ds_read_b64_tr_b16 {vr(b+4*a+2*h,2)}, v{8+a} offset:{sl*2048+h*1024}")
    k.e(f"s_waitcnt vmcnt({4*D-4})")
    trreads(0, 0)
    k.e("s_mov_b32 s41, 2\nL5_loop:")
    for s in range(2*D):
        if s == D: k.e("s_cmp_eq_u32 s41, 1\ns_cselect_b32 s14, 0, s14\ns_cselect_b32 s46, 0, s46")
        k.e(f"s_waitcnt vmcnt({4*(D-2)}) lgkmcnt(0)")
        trreads(s + 1, (s + 1) % 2)
        sl = s % D
        for m in range(4):
            a, b = m // 2, m % 2
            k.e(f"{MF} {vr(ACC+16*m,16)}, {vr(RAW+8*sl+4*a,4)}, {vr(WF+8*(s%2)+4*b,4)}, {vr(ACC+16*m,16)}")
        loads(s)
    k.e(f"s_sub_u32 s41, s41, 1\ns_cmp_lg_u32 s41, 0\ns_cbranch_scc1 L5_loop")
    k.e("s_waitcnt vmcnt(0) lgkmcnt(0)")
    reduce4(k, ACC, RED, 12)
    k.e("v_lshlrev_b32 v16, 16, v16")
    for r in range(16):
        hs = HR + r // 2
        k.e(f"v_lshlrev_b32 v17, 16, v{hs}" if r % 2 == 0 else f"v_and_b32 v17, 0xffff0000, v{hs}")
        k.e(f"v_add_f32 v{ACC+r}, v{ACC+r}, v16\nv_add_f32 v{ACC+r}, v{ACC+r}, v17")
    for q in range(8): k.e(f"v_cvt_pk_bf16_f32 v{ACC+16+q}, v{ACC+2*q}, v{ACC+2*q+1}")
    for q in (0, 1, 4, 5): k.e(f"v_permlane32_swap_b32 v{ACC+16+q}, v{ACC+18+q}")
    k.e(f"""
    buffer_store_dwordx4 {vr(ACC+16,4)}, v6, s[20:23], s38 offen
    buffer_store_dwordx4 {vr(ACC+20,4)}, v6, s[20:23], s38 offen offset:32
    L5_end:
    s_endpgm
    """)
    return k.text(176, 48), f"; @launch kernel=mlp2_kernel grid=(224,1,1) block=(256,1,1) lds={RED + 12*4096}"

def build(parts, path):
    hdr = open("cdna_kernels/" + NAME + ".s.ref").read().split("; Override launch")[0]
    s = hdr + "\n".join(p[1] for p in parts) + "\n"
    s += '.amdgcn_target "amdgcn-amd-amdhsa--gfx950"\n.text\n'
    s += "".join(p[0][0] for p in parts)
    s += '.section .rodata,"a"\n' + "".join(p[0][1] for p in parts)
    open(path, "w").write(s)

if __name__ == "__main__":
    build([p1(), p2(), p3(), p4(), p5()], "out.s")
```
